```python
import torch

def _softmax(x, axis=-1):
    return torch.softmax(x, dim=axis)

def _gelu(x):
    return torch.nn.functional.gelu(x, approximate='tanh')

def _silu(x):
    return torch.nn.functional.silu(x)

def _sigmoid(x):
    return torch.sigmoid(x)

def _layernorm(x, axis=-1, eps=1e-05):
    m = x.mean(dim=axis, keepdim=True)
    v = x.var(dim=axis, keepdim=True, unbiased=False)
    return (x - m) / torch.sqrt(v + eps)

def _scatter_add(tgt, idx, src, axis=0):
    return tgt.clone().index_add_(axis, idx, src)

def _segment_sum(src, seg, n):
    out = torch.zeros((n,) + src.shape[1:], dtype=src.dtype)
    return out.index_add_(0, seg, src)

def _pad(x, pw):
    flat = tuple((v for pair in reversed(pw) for v in pair))
    return torch.nn.functional.pad(x, flat)
kernel_name = 'interleave_layers__memory_aug_recurrent_mem_tr__glu_gated_bilinear__prompt'

def setup_inputs():

    _w = lambda a: (lambda t: t.to(torch.bfloat16) if t.is_floating_point() else t)(torch.as_tensor(a))

    def _A_setup():
        B, S, Dm = (1, 2048, 512)
        H, Dh = (32, 128)
        M, seg = (8, 32)
        seg = min(seg, S)
        S = S // seg * seg
        return {'x': _w((lambda *s: torch.randn(*s, dtype=torch.bfloat16) * 0.05)(B, S, Dm)), 'mem0': _w((lambda *s: torch.randn(*s, dtype=torch.bfloat16) * 0.2)(B, M, Dm)), 'Wq': _w((lambda *s: torch.randn(*s, dtype=torch.bfloat16) * 1.6)(Dm, H, Dh) * Dm ** (-0.5)), 'Wk': _w((lambda *s: torch.randn(*s, dtype=torch.bfloat16) * 1.6)(Dm, H, Dh) * Dm ** (-0.5)), 'Wv': _w((lambda *s: torch.randn(*s, dtype=torch.bfloat16) * 0.2)(Dm, H, Dh) * Dm ** (-0.5)), 'Wo': _w((lambda *s: torch.randn(*s, dtype=torch.bfloat16) * 0.2)(H, Dh, Dm) * (H * Dh) ** (-0.5)), 'seg_len': seg}
    _A_in = _A_setup()

    def _B_setup():
        B, S, D, F = (1, 2048, 512, 1376)
        return {'x': _w((lambda *s: torch.randn(*s, dtype=torch.bfloat16) * 0.05)(B, S, D)), 'w_gate': _w((lambda *s: torch.randn(*s, dtype=torch.bfloat16) * 0.4)(D, F) * D ** (-0.5)), 'w_up': _w((lambda *s: torch.randn(*s, dtype=torch.bfloat16) * 0.4)(D, F) * D ** (-0.5)), 'w_down': _w((lambda *s: torch.randn(*s, dtype=torch.bfloat16) * 0.4)(F, D) * F ** (-0.5))}
    _B_in = _B_setup()
    return {'A_x': _A_in['x'], 'A_mem0': _A_in['mem0'], 'A_Wq': _A_in['Wq'], 'A_Wk': _A_in['Wk'], 'A_Wv': _A_in['Wv'], 'A_Wo': _A_in['Wo'], 'A_seg_len': _A_in['seg_len'], 'B_x': _B_in['x'], 'B_w_gate': _B_in['w_gate'], 'B_w_up': _B_in['w_up'], 'B_w_down': _B_in['w_down']}

def reference(A_x, A_mem0, A_Wq, A_Wk, A_Wv, A_Wo, A_seg_len, B_x, B_w_gate, B_w_up, B_w_down):

    def _A_ref(x, mem0, Wq, Wk, Wv, Wo, seg_len):
        B, S, Dm = x.shape
        H, Dh = (Wq.shape[1], Wq.shape[2])
        M = mem0.shape[1]
        scale = Dh ** (-0.5)
        n_seg = S // seg_len
        L = M + seg_len
        idx = torch.arange(L)
        mask = (idx[:, None] < M) | (idx[:, None] >= idx[None, :])
        mem = mem0
        outs = []
        for s in range(n_seg):
            xs = x[:, s * seg_len:(s + 1) * seg_len, :].clone()
            h = torch.concatenate([mem, xs], axis=1)
            q = torch.einsum('btd,dhe->bhte', h, Wq)
            k = torch.einsum('btd,dhe->bhte', h, Wk)
            v = torch.einsum('btd,dhe->bhte', h, Wv)
            scores = torch.einsum('bhqe,bhke->bhqk', q, k) * scale
            scores = torch.where(mask[None, None], scores, -1000000000.0)
            p = _softmax(scores, axis=-1)
            o = torch.einsum('bhqk,bhke->bhqe', p, v)
            o = torch.einsum('bhte,hed->btd', o, Wo)
            mem = o[:, :M, :].clone()
            outs.append(o[:, M:, :])
        return torch.concatenate(outs, axis=1)

    def _B_ref(x, w_gate, w_up, w_down):
        g = torch.einsum('bsd,df->bsf', x, w_gate)
        u = torch.einsum('bsd,df->bsf', x, w_up)
        h = g * u
        return torch.einsum('bsf,fd->bsd', h, w_down)
    x = A_x
    x = x + _A_ref(_layernorm(x, axis=-1), A_mem0, A_Wq, A_Wk, A_Wv, A_Wo, A_seg_len)
    x = x + _B_ref(_layernorm(x, axis=-1), B_w_gate, B_w_up, B_w_down)
    x = x + _A_ref(_layernorm(x, axis=-1), A_mem0, A_Wq, A_Wk, A_Wv, A_Wo, A_seg_len)
    x = x + _B_ref(_layernorm(x, axis=-1), B_w_gate, B_w_up, B_w_down)
    return x
```

```python
import numpy as np, sys
sys.path.insert(0,'dev')
src2=open('mb2.py').read()
head=src2[src2.index("e('''.amdgcn_target")+5:src2.index("  ; producer store address")]
tail=src2[src2.index(".section .rodata"):src2.index(".end_amdhsa_kernel")]+".end_amdhsa_kernel\n"
def gen(stf, ldf, nsteps, nrep, waitst, masked, work):
    L=[]; e=L.append
    e('; @launch grid=(256,1,1) block=(256,1,1) lds=163840'); e(head)
    e(f'''
  ; producer: lane(G=l/32,q=(l/16)%2,c=l%16): store j(0,1): octet = w*16 + j*8 + G*4 + c/4 ; unit=octet*2+q ; addr = unit*2048 + head*64 + (c%4)*16
  v_lshrrev_b32 v5, 5, v2
  v_lshlrev_b32 v5, 2, v5
  v_bfe_u32 v6, v2, 2, 2
  v_add_u32 v5, v5, v6
  s_lshl_b32 s27, s25, 4
  v_add_u32 v5, s27, v5
  v_lshlrev_b32 v5, 1, v5
  v_bfe_u32 v6, v2, 4, 1
  v_add_u32 v5, v5, v6
  v_lshlrev_b32 v5, 11, v5
  v_and_b32 v6, 3, v2
  v_lshlrev_b32 v6, 4, v6
  v_add_u32 v5, v5, v6
  s_lshl_b32 s27, s26, 6
  v_add_u32 v5, s27, v5
  s_lshl_b32 s28, s26, 2
  s_add_u32 s28, s28, s25
  s_lshl_b32 s27, s28, 11
  v_lshlrev_b32 v6, 4, v2
  v_add_u32 v6, s27, v6
  ; publish: unit*64 + (l/16)*16 + (l%4)*4 + rep*8192
  s_lshl_b32 s27, s28, 6
  v_lshrrev_b32 v7, 4, v2
  v_lshlrev_b32 v7, 4, v7
  v_and_b32 v8, 3, v2
  v_lshlrev_b32 v8, 2, v8
  v_add3_u32 v7, v7, v8, s27
  v_bfe_u32 v8, v2, 2, 2
  v_and_b32 v8, {nrep-1}, v8
  v_lshlrev_b32 v8, 13, v8
  v_add_u32 v7, v7, v8
  s_lshl_b32 s27, s25, 11
  v_lshlrev_b32 v8, 4, v2
  v_add_u32 v12, s27, v8
  s_and_b32 s29, s26, {nrep-1}
  s_lshl_b32 s29, s29, 13
  v_add_u32 v8, s29, v12
  v_lshlrev_b32 v9, 4, v2
  v_mov_b32 v10, -1
  s_mov_b32 s30, 0
  s_mov_b32 s31, 0x80000
  s_mov_b32 s32, 0x88000
  s_mov_b32 s33, 0x90000
  s_mov_b32 s40, 0x8000
  s_mov_b32 s34, 0
  v_mov_b32 v20, 0x3f803f80
  v_mov_b32 v21, 0x3f803f80
  v_mov_b32 v22, 0x3f803f80
  v_mov_b32 v23, 0x3f803f80
  s_mov_b32 s36, 0
  s_mov_b32 s54, 0
  s_mov_b32 s59, 0
  s_mov_b32 s60, 0xffff0000
  s_memtime s[44:45]
  s_waitcnt lgkmcnt(0)
L_loop:''')
    for i in range(work): e('  v_mfma_f32_16x16x32_bf16 v[60:63], v[64:67], v[68:71], v[60:63]')
    e(f'''
  v_mov_b32 v11, s34
  v_and_or_b32 v20, v20, -2, v11
  v_and_or_b32 v21, v21, -2, v11
  v_and_or_b32 v22, v22, -2, v11
  v_and_or_b32 v23, v23, -2, v11
  s_memtime s[50:51]
  buffer_store_dwordx4 v[20:23], v5, s[20:23], 0 offen {stf}
  buffer_store_dwordx4 v[20:23], v5, s[20:23], s40 offen {stf}
  s_sub_u32 s35, 0, s34
  s_mov_b32 s37, 0''')
    if waitst: e('  s_waitcnt vmcnt(0)')
    e(f'''L_p1:
  buffer_load_dwordx4 v[24:27], v6, s[20:23], 0 offen {ldf}
  buffer_load_dwordx4 v[28:31], v6, s[20:23], 0 offen offset:1024 {ldf}
  s_add_u32 s37, s37, 1
  s_add_u32 s36, s36, 1
  s_cmp_gt_u32 s37, 0x40000
  s_cbranch_scc1 L_fail
  s_waitcnt vmcnt(0)
  v_xor_b32 v40, s35, v24''')
    for r in range(25,32): e(f'  v_bitop3_b32 v40, v{r}, s35, v40 bitop3:0xbe')
    e('  v_and_b32 v40, 1, v40')
    if masked: e('  v_cmpx_ne_u32 vcc, 0, v40\n  s_cbranch_execnz L_p1\n  s_mov_b64 exec, -1')
    else: e('  v_cmp_ne_u32 vcc, 0, v40\n  s_cbranch_vccnz L_p1')
    e('  s_memtime s[52:53]')
    for r in range(8):
        e(f'  v_lshlrev_b32 v{32+2*r}, 16, v{24+r}\n  v_and_b32 v{33+2*r}, s60, v{24+r}')
    for r in range(8): e(f'  v_add_f32 v{32+r}, v{32+r}, v{40+r}')
    e('  s_nop 1')
    for a,b in ((32,34),(33,35),(36,38),(37,39)): e(f'  v_permlane32_swap_b32 v{a}, v{b}')
    for a,b in ((32,34),(33,35),(36,38),(37,39)): e(f'  v_add_f32 v{a}, v{a}, v{b}')
    e(f'''  s_nop 0
  v_permlane16_swap_b32 v32, v33
  v_permlane16_swap_b32 v36, v37
  v_add_f32 v32, v32, v33
  v_add_f32 v36, v36, v37
  s_nop 0
  v_add_f32_dpp v32, v32, v32 row_ror:8 row_mask:0xf bank_mask:0xf
  s_nop 0
  v_add_f32_dpp v36, v36, v36 row_ror:8 row_mask:0xf bank_mask:0xf
  s_nop 0
  v_add_f32_dpp v32, v32, v32 row_ror:4 row_mask:0xf bank_mask:0xf
  s_nop 0
  v_add_f32_dpp v36, v36, v36 row_ror:4 row_mask:0xf bank_mask:0xf
  v_cvt_pk_bf16_f32 v24, v32, v36
  v_min_u32 v24, -2, v24
  s_mov_b32 exec_lo, {'-1' if nrep==4 else '0x000f000f'}
  s_mov_b32 exec_hi, {'-1' if nrep==4 else '0x000f000f'}
  buffer_store_dword v24, v7, s[20:23], s32 offen {stf}
  buffer_store_dword v10, v7, s[20:23], s31 offen {stf}
  s_mov_b64 exec, -1
  s_waitcnt lgkmcnt(0)
  s_sub_u32 s52, s52, s50
  s_add_u32 s54, s54, s52
  s_mov_b32 s37, 0''')
    if waitst: e('  s_waitcnt vmcnt(0)')
    e(f'''L_p2:
  s_add_u32 s59, s59, 1
  buffer_load_dwordx4 v[24:27], v8, s[20:23], s32 offen {ldf}
  buffer_load_dwordx4 v[28:31], v8, s[20:23], s32 offen offset:1024 {ldf}
  s_add_u32 s37, s37, 1
  s_cmp_gt_u32 s37, 0x40000
  s_cbranch_scc1 L_fail
  s_waitcnt vmcnt(0)
  v_max3_u32 v40, v24, v25, v26
  v_max3_u32 v40, v40, v27, v28
  v_max3_u32 v40, v40, v29, v30
  v_max_u32 v40, v40, v31''')
    if masked: e('  v_cmpx_eq_u32 vcc, -1, v40\n  s_cbranch_execnz L_p2\n  s_mov_b64 exec, -1')
    else: e('  v_cmp_eq_u32 vcc, -1, v40\n  s_cbranch_vccnz L_p2')
    e('''  ds_write_b128 v12, v[24:27]
  ds_write_b128 v12, v[28:31] offset:1024
  s_waitcnt lgkmcnt(0)
  s_barrier''')
    for i in range(8): e(f'  ds_read_b128 v[{80+4*i}:{83+4*i}], v9 offset:{1024*i}')
    e(f'''  s_waitcnt lgkmcnt(0)
  s_barrier
  s_mov_b32 s43, s33
  s_mov_b32 s33, s31
  s_mov_b32 s31, s32
  s_mov_b32 s32, s43
  s_xor_b32 s34, s34, 1
  s_add_u32 s30, s30, 1
  s_cmp_lt_u32 s30, {nsteps}
  s_cbranch_scc1 L_loop
  s_memtime s[48:49]
  s_waitcnt lgkmcnt(0)
  s_sub_u32 s48, s48, s44
  v_mov_b32 v24, s59
  v_mov_b32 v25, s48
  v_mov_b32 v26, s36
  v_mov_b32 v27, s54
  s_lshl_b32 s27, s28, 4
  v_mov_b32 v4, 0
  buffer_store_dwordx4 v[24:27], v4, s[12:15], s27 offen
  buffer_store_dword v80, v4, s[12:15], s27 offen offset:2048
  s_waitcnt vmcnt(0)
  s_endpgm
L_fail:
  s_mov_b64 exec, -1
  v_mov_b32 v24, 0xdead
  v_mov_b32 v25, s30
  v_mov_b32 v4, 0
  s_lshl_b32 s27, s28, 4
  buffer_store_dwordx2 v[24:25], v4, s[12:15], s27 offen
  s_waitcnt vmcnt(0)
L_end:
  s_endpgm''')
    e(tail)
    return '\n'.join(L)
from runner import *
ns=64
V=[('','sc1',1,1,0,0),('','sc1',1,1,1,0),('','sc1',1,0,1,0),('','sc1',4,1,1,0),('','sc1',4,0,1,0),('','sc1',4,1,1,64),('sc1','sc1',4,1,1,0),('sc1','sc1',1,1,1,0)]
for vi,(stf,ldf,nrep,waitst,masked,work) in enumerate(V):
    p=f'mb3_{vi}.s'
    open(p,'w').write(gen(stf,ldf,ns,nrep,waitst,masked,work))
    if len(sys.argv)>1:
        for t,o,d in run_simple(p,'mb_kernel',np.zeros(64,np.uint32),1<<20,ws_fill=0xff,reps=2):
            r=o[:512].reshape(128,4)
            print(V[vi],'cyc/step',r[:,1].mean()/ns,'polls1',r[:,2].mean()/ns,'polls2',r[:,0].mean()/ns,'hop1',r[:,3].mean()/ns,hex(o[512]))
    else: build(p,'mb_kernel',4)
```
